```python
import torch

def _softmax(x, axis=-1):
    return torch.softmax(x, dim=axis)
def _gelu(x):
    return torch.nn.functional.gelu(x, approximate="tanh")
def _silu(x):
    return torch.nn.functional.silu(x)
def _sigmoid(x):
    return torch.sigmoid(x)
def _layernorm(x, axis=-1, eps=1e-5):
    m = x.mean(dim=axis, keepdim=True)
    v = x.var(dim=axis, keepdim=True, unbiased=False)
    return (x - m) / torch.sqrt(v + eps)
def _scatter_add(tgt, idx, src, axis=0):
    return tgt.clone().index_add_(axis, idx, src)
def _segment_sum(src, seg, n):
    out = torch.zeros((n,) + src.shape[1:], dtype=src.dtype)
    return out.index_add_(0, seg, src)
def _pad(x, pw):
    flat = tuple(v for pair in reversed(pw) for v in pair)
    return torch.nn.functional.pad(x, flat)

kernel_name = 'standalone__gqa_block_cached__near_ridge'

def setup_inputs():

    _w = (lambda a: (lambda t: t.to(torch.bfloat16) if t.is_floating_point() else t)(torch.as_tensor(a)))
    B, Sq, D = 8, 144, 640
    Hq, Hkv, Sk, Dh = 32, 32, 1024, 128
    assert Hq % Hkv == 0, (Hq, Hkv)
    return {
        "x": _w((lambda *s: torch.randn(*s, dtype=torch.bfloat16) * 0.8)(B, Sq, D)),
        "k_cache": _w((lambda *s: torch.randn(*s, dtype=torch.bfloat16) * 0.8)(B, Hkv, Sk, Dh)),
        "v_cache": _w((lambda *s: torch.randn(*s, dtype=torch.bfloat16) * 0.05)(B, Hkv, Sk, Dh)),
        "wq": _w((lambda *s: torch.randn(*s, dtype=torch.bfloat16) * 0.8)(D, Hq * Dh) * (D ** -0.5)),
        "wo": _w((lambda *s: torch.randn(*s, dtype=torch.bfloat16) * 0.05)(Hq * Dh, D) * ((Hq * Dh) ** -0.5)),
    }

def reference(x, k_cache, v_cache, wq, wo):
    B, Sq, D = x.shape
    Hq, Dh = 32, 128
    Hkv = k_cache.shape[1]
    rep = Hq // Hkv
    q = (lambda x, *d: x.permute(*d))((x @ wq).reshape(B, Sq, Hq, Dh), 0, 2, 1, 3)
    k = (lambda x, n, axis: torch.repeat_interleave(x, n, dim=axis))(k_cache, rep, axis=1)
    v = (lambda x, n, axis: torch.repeat_interleave(x, n, dim=axis))(v_cache, rep, axis=1)
    scores = torch.einsum("bhqd,bhkd->bhqk", q, k) * (Dh ** -0.5)
    p = _softmax(scores, axis=-1)
    o = torch.einsum("bhqk,bhkd->bhqd", p, v)
    return (lambda x, *d: x.permute(*d))(o, 0, 2, 1, 3).reshape(B, Sq, Hq * Dh) @ wo
```

```python
import re

class Em:
    def __init__(self):
        self.lines = []
        self.lds_seq = 0
        self.lds_done = 0
        self.tok = {}
    def __call__(self, s):
        for ln in s.split("\n"):
            ln = ln.strip()
            if ln:
                self.lines.append(ln)
    def label(self, l):
        self.lines.append(l + ":")
    def comment(self, c):
        self.lines.append("; " + c)
    def lds(self, s, tok=None):
        if self.lds_seq - self.lds_done >= 15:
            self("s_waitcnt lgkmcnt(14)")
            self.lds_done = self.lds_seq - 14
        self(s)
        self.lds_seq += 1
        if tok is not None:
            self.tok[tok] = self.lds_seq
    def need(self, *toks):
        n = max(self.tok[t] for t in toks)
        if n > self.lds_done:
            out = self.lds_seq - n
            assert out <= 15, "lgkmcnt overflow %d" % out
            self("s_waitcnt lgkmcnt(%d)" % out)
            self.lds_done = n
    def lds_all(self, extra=""):
        self("s_waitcnt lgkmcnt(0)" + extra)
        self.lds_done = self.lds_seq
    def lds_reset(self):
        self.lds_done = self.lds_seq
    def text(self):
        out = []
        for l in self.lines:
            if l.endswith(":") or l.startswith(".") or l.startswith(";"):
                out.append(l)
            else:
                out.append("    " + l)
        return "\n".join(out) + "\n"

def vr(base, n=1):
    return "v%d" % base if n == 1 else "v[%d:%d]" % (base, base + n - 1)
def sr(base, n=1):
    return "s%d" % base if n == 1 else "s[%d:%d]" % (base, base + n - 1)

_reg = re.compile(r"^(-?)(abs\()?([vas])(\d+|\[(\d+):(\d+)\])\)?$")
def parse_reg(op):
    op = op.strip()
    if op in ("vcc", "exec", "m0", "scc", "vcc_lo", "vcc_hi"):
        return {("x", "vcc" if op.startswith("vcc") else op)}
    m = _reg.match(op)
    if not m:
        return set()
    k = m.group(3)
    if m.group(5) is not None:
        return {(k, i) for i in range(int(m.group(5)), int(m.group(6)) + 1)}
    return {(k, int(m.group(4)))}

TRANS = ("v_exp_f32", "v_log_f32", "v_rcp_f32", "v_rsq_f32", "v_sqrt_f32", "v_sin_f32", "v_cos_f32")

class Ins:
    pass

def parse_ins(line):
    line = line.split(";")[0].strip()
    if not line or line.endswith(":") or line.startswith("."):
        return None
    parts = line.split(None, 1)
    op = parts[0]
    rest = parts[1] if len(parts) > 1 else ""
    ops = []
    cur = ""; depth = 0
    for ch in rest:
        if ch in "[(":
            depth += 1
        if ch in "])":
            depth -= 1
        if ch == "," and depth == 0:
            ops.append(cur.strip()); cur = ""
        else:
            cur += ch
    if cur.strip():
        ops.append(cur.strip())
    mods = ""
    if ops:
        sp = ops[-1].split(None, 1)
        ops[-1] = sp[0]
        mods = sp[1] if len(sp) > 1 else ""
    I = Ins(); I.text = line; I.op = op; I.rd = set(); I.wr = set(); I.kind = "other"
    I.srcc = set(); I.ab = set(); I.passes = 0; I.states = 1; I.sdata = set()
    R = [parse_reg(o) for o in ops]
    base = op.replace("_e32", "").replace("_e64", "").replace("_dpp", "")
    if op == "s_nop":
        I.states = int(ops[0], 0) + 1; I.kind = "nop"
    elif op.startswith("v_mfma"):
        I.kind = "mfma"; I.wr = R[0]; I.ab = R[1] | R[2]; I.srcc = R[3]; I.rd = I.ab | I.srcc
        I.passes = 8 if "32x32x16" in op else 4
        I.dkey = ops[0]; I.ckey = ops[3]
    elif op.startswith("v_cmp"):
        I.kind = "valu"; I.wr = R[0]; I.rd = set().union(*R[1:])
        if op.startswith("v_cmpx"): I.wr = I.wr | {("x", "exec")}
    elif op.startswith("v_readfirstlane") or op.startswith("v_readlane"):
        I.kind = "valu"; I.wr = R[0]; I.rd = set().union(*R[1:]); I.rl = True
    elif op.startswith("v_permlane"):
        I.kind = "valu"; I.wr = R[0] | R[1]; I.rd = R[0] | R[1]; I.perm = True
    elif op.startswith("v_"):
        I.kind = "valu"; I.wr = R[0]; I.rd = set().union(*R[1:]) if len(R) > 1 else set()
        if base in ("v_add_co_u32", "v_addc_co_u32", "v_sub_co_u32", "v_subb_co_u32"):
            I.wr = R[0] | R[1]; I.rd = set().union(*R[2:])
        if base.startswith("v_fmac") or base.startswith("v_dot2c"):
            I.rd |= R[0]
        if base.startswith("v_cndmask") and len(R) == 3:
            I.rd |= {("x", "vcc")}
        if base in TRANS: I.trans = True
        if "dpp" in op or "row_" in mods or "quad_perm" in mods: I.dpp = True
    elif op.startswith("ds_read") or op.startswith("ds_bpermute") or op.startswith("ds_swizzle"):
        I.kind = "ds"; I.wr = R[0]; I.rd = set().union(*R[1:])
    elif op.startswith("ds_"):
        I.kind = "ds"; I.rd = set().union(*R)
        if op.startswith("ds_add_rtn") : I.wr = R[0]; I.rd = set().union(*R[1:])
    elif op.startswith("buffer_load") or op.startswith("global_load"):
        I.kind = "vmem"
        if "lds" in mods.split() or "_lds_" in op:
            I.rd = set().union(*R) | {("x", "m0")}; I.dma = True
        else:
            I.wr = R[0]; I.rd = set().union(*R[1:])
    elif op.startswith("buffer_store") or op.startswith("global_store"):
        I.kind = "vmem"; I.rd = set().union(*R)
        if "x3" in op or "x4" in op:
            I.sdata = R[0] if op.startswith("buffer") else R[1]
    elif op.startswith("buffer_atomic") or op.startswith("global_atomic"):
        I.kind = "vmem"; I.rd = set().union(*R)
        if "sc0" in mods.split(): I.wr = R[0]
    elif op.startswith("buffer_") :
        I.kind = "vmem"
    elif op.startswith("s_"):
        I.kind = "salu"
        if op.startswith("s_cmp") or op.startswith("s_cbranch") or op.startswith("s_branch") or op in ("s_barrier", "s_waitcnt", "s_endpgm", "s_setprio", "s_sleep"):
            I.rd = set().union(*R) if R else set()
        else:
            I.wr = R[0] if R else set(); I.rd = set().union(*R[1:]) if len(R) > 1 else set()
    return I

def check_seq(seq, report):
    n = len(seq)
    for j in range(n):
        c = seq[j]
        dist = 0
        for i in range(j - 1, max(-1, j - 24), -1):
            p = seq[i]
            need = 0; why = ""
            cv = lambda s: {x for x in s if x[0] in "va"}
            if p.kind == "valu":
                if c.kind == "mfma" and (cv(p.wr) & c.rd): need = 2; why = "valu->mfma"
                if getattr(c, "perm", False) and (cv(p.wr) & c.rd): need = max(need, 2); why = "valu->permlane"
                if getattr(c, "dpp", False) and (cv(p.wr) & c.rd): need = max(need, 2); why = "valu->dpp"
                if getattr(c, "rl", False) and (cv(p.wr) & c.rd): need = max(need, 1); why = "valu->readlane"
                if getattr(p, "trans", False) and c.kind == "valu" and not getattr(c, "trans", False) and (p.wr & c.rd): need = max(need, 1); why = "trans->valu"
                sw = {x for x in p.wr if x[0] == "s" or x == ("x", "vcc")}
                if sw and c.kind == "vmem" and (sw & c.rd): need = max(need, 5); why = "valu sgpr->vmem"
                if sw and c.kind == "valu" and (sw & c.rd): need = max(need, 4 if getattr(c, "rl", False) else 2); why = "valu sgpr->valu"
                if ("x", "exec") in p.wr and c.kind == "mfma": need = max(need, 4); why = "exec->mfma"
            if p.kind == "mfma":
                big = 12 if p.passes == 8 else 8
                if c.kind == "mfma":
                    if p.wr & c.ab: need = big; why = "mfma D->mfma AB"
                    elif p.wr & c.srcc:
                        if not (p.dkey == c.ckey and p.passes == c.passes):
                            need = 10 if p.passes == 8 else 6; why = "mfma D->mfma C overlap"
                    elif p.wr & c.wr:
                        need = 10 if p.passes == 8 else 6; why = "mfma D->mfma D waw (conservative)"
                elif c.kind in ("valu", "ds", "vmem"):
                    if p.wr & (c.rd | c.wr): need = big; why = "mfma D->use"
                    if c.kind == "valu" and (p.srcc & c.wr): need = max(need, 7 if p.passes == 8 else 3); why = why or "mfma C war"
            if p.kind == "salu" and ("x", "m0") in p.wr and getattr(c, "dma", False): need = max(need, 1); why = "m0->dma"
            if p.sdata and (p.sdata & c.wr): need = max(need, 2 if c.kind == "valu" else 1); why = "store data war"
            if need > dist:
                report.append("HAZARD %s: need %d have %d\n   P: %s\n   C: %s" % (why, need, dist, p.text, c.text))
            dist += p.states
            if dist >= 20: break

def check_text(text):
    lines = text.split("\n")
    ins = []; labels = {}
    for ln in lines:
        s = ln.split(";")[0].strip()
        if s.endswith(":"):
            labels[s[:-1]] = len(ins); continue
        I = parse_ins(ln)
        if I is not None: ins.append(I)
    report = []
    seg = []
    for I in ins:
        seg.append(I)
        if I.op in ("s_branch", "s_endpgm"):
            check_seq(seg, report); seg = []
    if seg: check_seq(seg, report)
    for k, I in enumerate(ins):
        if I.op.startswith("s_cbranch") or I.op == "s_branch":
            tgt = I.text.split()[-1]
            if tgt in labels:
                t = labels[tgt]
                pre = []
                for q in range(k, max(-1, k - 24), -1):
                    if q != k and ins[q].op in ("s_branch", "s_endpgm"): break
                    pre.insert(0, ins[q])
                post = []
                for q in range(t, min(len(ins), t + 24)):
                    post.append(ins[q])
                    if ins[q].op in ("s_branch", "s_endpgm"): break
                check_seq(pre + post, report)
    seen = []
    for r in report:
        if r not in seen: seen.append(r)
    return seen
```

```python
import sys, struct
from asmlib import *
KN = "standalone__gqa_block_cached__near_ridge"

def f32(x):
    return "0x%08x" % struct.unpack("<I", struct.pack("<f", x))[0]

QSLOT = 34816; QW = 18432
K0OFF = 139264
Q9X = 156672
KVSLOT = 33792; VOFF = 17408
KROW = 272
CMB = 67584; CMBW = 8704
LDS_K1 = 163840
SCALE = 1.4426950408889634 / (128 ** 0.5)
NEGINF = "0xff800000"; POSINF = "0x7f800000"
THR = f32(8.0)

MF32 = "v_mfma_f32_32x32x16_bf16"
MF16 = "v_mfma_f32_16x16x32_bf16"

def k1(e):
    e.label("attn_kernel")
    e("s_cmp_ge_u32 s2, 256")
    e("s_cbranch_scc1 L_k1_end")
    e("s_load_dwordx8 s[4:11], s[0:1], 0")
    e("s_load_dwordx8 s[12:19], s[0:1], 32")
    vL = 250
    e(f"v_and_b32 v{vL}, 63, v0")
    e("v_lshrrev_b32 v1, 6, v0")
    e("s_lshr_b32 s41, s2, 5")
    e("v_readfirstlane_b32 s40, v1")
    e("s_and_b32 s42, s2, 31")
    e("s_lshl_b32 s3, s2, 18")
    e("s_mul_i32 s43, s41, 184320")
    e("s_lshl_b32 s44, s42, 8")
    e("s_waitcnt lgkmcnt(0)")
    e("s_add_u32 s28, s6, s3\ns_addc_u32 s29, s7, 0\ns_mov_b32 s30, 0x40000\ns_mov_b32 s31, 0x20000")
    e("s_add_u32 s32, s8, s3\ns_addc_u32 s33, s9, 0\ns_mov_b32 s34, 0x40000\ns_mov_b32 s35, 0x20000")
    e("s_add_u32 s20, s4, s43\ns_addc_u32 s21, s5, 0\ns_mov_b32 s22, 184320\ns_mov_b32 s23, 0x20000")
    e("s_add_u32 s24, s10, s44\ns_addc_u32 s25, s11, 0\ns_sub_u32 s26, 5242880, s44\ns_mov_b32 s27, 0x20000")
    e("s_mov_b32 s36, s18\ns_mov_b32 s37, s19\ns_mov_b32 s38, 9437184\ns_mov_b32 s39, 0x20000")
    e("s_cmp_ge_u32 s40, 4")
    e("s_cbranch_scc1 L_helper")
    main_wave(e, vL)
    helper_wave(e, vL)
    e.label("L_k1_end")
    e("s_endpgm")

def lane_fields(e, vL, t):
    e(f"v_bfe_u32 v{t}, v{vL}, 2, 2")
    e(f"v_and_b32 v{t+1}, 3, v{vL}")
    e(f"v_bfe_u32 v{t+2}, v{vL}, 4, 1")
    e(f"v_lshrrev_b32 v{t+3}, 5, v{vL}")
    e(f"v_lshrrev_b32 v{t+4}, 4, v{vL}")
    return t, t+1, t+2, t+3, t+4

def main_wave(e, vL):
    O = 0; QF = 64; NM = 96; SA = 112; SB = 128; P = 144; KF = 152; VF = 184
    vl = 216; vmx = 217; t0 = 218; t1 = 219
    KA = 220; VA = 221
    XA = 225
    WA = 229
    vXo = 233; vWo = 234; K0A = 235
    T = 236
    XF = 112
    WF = 152
    e(f"v_lshrrev_b32 v{T}, 3, v{vL}")
    e(f"v_mul_u32_u24 v{vXo}, 1280, v{T}")
    e(f"v_and_b32 v{T+1}, 7, v{vL}")
    e(f"v_lshrrev_b32 v{T+2}, 4, v{vL}")
    e(f"v_xor_b32 v{T+1}, v{T+1}, v{T+2}")
    e("s_and_b32 s43, s40, 1\ns_lshl_b32 s43, s43, 2")
    e(f"v_xor_b32 v{T+1}, s43, v{T+1}")
    e(f"v_lshl_add_u32 v{vXo}, v{T+1}, 4, v{vXo}")
    e(f"v_lshlrev_b32 v{T+3}, 2, v{T+2}")
    e(f"v_and_b32 v{T+4}, 15, v{vL}")
    e(f"v_xor_b32 v{T+3}, v{T+3}, v{T+4}")
    e(f"v_lshlrev_b32 v{vWo}, 13, v{T+2}")
    e(f"v_lshl_add_u32 v{vWo}, v{T+3}, 4, v{vWo}")
    e("s_mul_i32 s44, s40, 10240")
    e("s_lshl_b32 s45, s40, 10")
    e("s_lshl_b32 s46, s40, 17")
    e("s_lshl_b32 s47, s40, 12")
    e(f"s_add_u32 s47, s47, {QW}")
    def dma_stage(tag):
        for n in range(4):
            e(f"s_add_u32 s51, s45, s50")
            if n: e(f"s_add_u32 s51, s51, {n*4096}")
            e("s_mov_b32 m0, s51")
            e(f"s_add_u32 s52, s44, s48")
            if n: e(f"s_add_u32 s52, s52, {n*40960}")
            e(f"buffer_load_dwordx4 v{vXo}, s[20:23], s52 offen lds")
            e(f"s_add_u32 s51, s47, s50")
            if n: e(f"s_add_u32 s51, s51, {n*1024}")
            e("s_mov_b32 m0, s51")
            e(f"s_add_u32 s52, s46, s49")
            if n: e(f"s_add_u32 s52, s52, {n*32768}")
            e(f"buffer_load_dwordx4 v{vWo}, s[24:27], s52 offen lds")
        e("s_cmp_ge_u32 s40, 2")
        e(f"s_cbranch_scc1 L_skip5_{tag}")
        e(f"s_add_u32 s51, s45, s50")
        e(f"s_add_u32 s51, s51, 16384")
        e("s_mov_b32 m0, s51")
        e(f"s_add_u32 s52, s44, s48")
        e(f"s_add_u32 s52, s52, {16*10240}")
        e(f"buffer_load_dwordx4 v{vXo}, s[20:23], s52 offen lds")
        e.label(f"L_skip5_{tag}")
        e("s_add_u32 s48, s48, 128")
        e("s_add_u32 s49, s49, 524288")
        e(f"s_add_u32 s50, s50, {QSLOT}")
        e(f"s_cmp_ge_u32 s50, {4*QSLOT}")
        e(f"s_cselect_b32 s50, 0, s50")
    e(f"s_mov_b32 s48, 0\ns_mov_b32 s49, 0\ns_mov_b32 s50, {2*QSLOT}\ns_mov_b32 s53, 0")
    e.label("L_m_dma0")
    dma_stage("p")
    e("s_add_u32 s53, s53, 1\ns_cmp_lt_u32 s53, 4\ns_cbranch_scc1 L_m_dma0")
    r, c, g1, h, g = lane_fields(e, vL, T)
    a = T + 5; b_ = T + 6; cc = T + 7
    e(f"v_lshl_add_u32 v{a}, v{h}, 3, v{r}")
    e(f"v_lshlrev_b32 v{a}, 8, v{a}")
    e(f"v_lshrrev_b32 v{b_}, 1, v{c}")
    e(f"v_lshl_add_u32 v{a}, v{b_}, 3, v{a}")
    e(f"v_add_u32 v{a}, {QW + 2*QSLOT}, v{a}")
    e(f"v_and_b32 v{b_}, 1, v{c}")
    e(f"v_lshl_add_u32 v{b_}, v{b_}, 1, v{g1}")
    e(f"v_lshl_add_u32 v{b_}, v{r}, 2, v{b_}")
    for Tt in range(4):
        e(f"v_xor_b32 v{cc}, {4*Tt}, v{b_}")
        e(f"v_lshl_add_u32 v{WA+Tt}, v{cc}, 4, v{a}")
    e(f"v_lshl_add_u32 v{a}, v{h}, 2, v{r}")
    e(f"v_lshlrev_b32 v{a}, 8, v{a}")
    e(f"v_lshrrev_b32 v{cc}, 1, v{c}")
    e(f"v_lshl_add_u32 v{a}, v{cc}, 3, v{a}")
    e(f"v_add_u32 v{a}, {VOFF}, v{a}")
    for Tt in range(4):
        e(f"v_xor_b32 v{cc}, {4*Tt}, v{b_}")
        e(f"v_lshl_add_u32 v{VA+Tt}, v{cc}, 4, v{a}")
    e(f"v_and_b32 v{a}, 31, v{vL}")
    e(f"v_mul_u32_u24 v{KA}, {KROW}, v{a}")
    e(f"v_lshl_add_u32 v{KA}, v{h}, 5, v{KA}")
    e(f"v_add_u32 v{K0A}, {K0OFF}, v{KA}")
    e(f"v_lshlrev_b32 v{a}, 7, v{a}")
    e("s_lshl_b32 s43, s40, 12")
    e(f"s_add_u32 s43, s43, {2*QSLOT}")
    e(f"v_add_u32 v{a}, s43, v{a}")
    e(f"v_bfe_u32 v{b_}, v{vL}, 1, 3")
    e(f"v_xor_b32 v{b_}, v{b_}, v{h}")
    for ks in range(4):
        e(f"v_xor_b32 v{cc}, {2*ks}, v{b_}")
        e(f"v_lshl_add_u32 v{XA+ks}, v{cc}, 4, v{a}")
    for i in range(64):
        e(f"v_mov_b32 v{O+i}, 0")
    e("s_mov_b32 s53, 0")
    e(f"s_mov_b32 s54, {2*QSLOT}")
    e("s_waitcnt vmcnt(24)")
    e.label("L_m_q")
    e("s_barrier")
    e.lds_reset()
    def qreads(ks):
        bsel = ks & 1
        e.lds(f"ds_read_b128 {vr(XF+4*bsel,4)}, v{XA+ks}", ("x", ks))
        for Tt in range(4):
            for ri in range(2):
                e.lds(f"ds_read_b64_tr_b16 {vr(WF+16*bsel+4*Tt+2*ri,2)}, v{WA+Tt} offset:{(16*ks+4*ri)*256}", ("w", ks, Tt))
    qreads(0)
    e("s_cmp_eq_u32 s53, 0\ns_cbranch_scc1 L_m_q_nodma")
    e("s_cmp_ge_u32 s53, 7\ns_cbranch_scc1 L_m_q_nodma")
    dma_stage("q")
    e.label("L_m_q_nodma")
    for ks in range(4):
        bsel = ks & 1
        for Tt in range(4):
            e.need(("x", ks), ("w", ks, Tt))
            e(f"{MF32} {vr(O+16*Tt,16)}, {vr(WF+16*bsel+4*Tt,4)}, {vr(XF+4*bsel,4)}, {vr(O+16*Tt,16)}")
            if Tt == 0 and ks < 3:
                e.need(("w", ks, 3))
                qreads(ks + 1)
    e(f"s_add_u32 s54, s54, {QSLOT}")
    e(f"s_mov_b32 s55, {QSLOT}")
    e(f"s_cmp_ge_u32 s54, {4*QSLOT}")
    e(f"s_cselect_b32 s55, {(-3*QSLOT) & 0xffffffff}, s55")
    e(f"s_cselect_b32 s54, 0, s54")
    for i in range(4):
        e(f"v_add_u32 v{XA+i}, s55, v{XA+i}")
        e(f"v_add_u32 v{WA+i}, s55, v{WA+i}")
    e("s_add_u32 s53, s53, 1")
    e("s_cmp_lt_u32 s53, 8\ns_cbranch_scc1 L_m_q_w16")
    e("s_waitcnt vmcnt(0)")
    e.label("L_m_q_w16")
    e("s_waitcnt vmcnt(16)")
    e("s_cmp_lt_u32 s53, 10\ns_cbranch_scc1 L_m_q")
    e("s_nop 7")
    e(f"s_mov_b32 s43, {f32(SCALE)}")
    for i in range(64):
        e(f"v_mul_f32 v{O+i}, s43, v{O+i}")
    for i in range(32):
        e(f"v_cvt_pk_bf16_f32 v{QF+i}, v{O+2*i}, v{O+2*i+1}")
    for i in range(16):
        e(f"v_mov_b32 v{NM+i}, 0")
    e("s_barrier")
    e.lds_reset()
    def kreads(addr, off, tag, lo=0, hi=8):
        for s in range(lo, hi):
            e.lds(f"ds_read_b128 {vr(KF+4*s,4)}, v{addr} offset:{off + 64*(s>>1) + 16*(s&1)}", ("k", tag, s))
    kreads(K0A, 0, "p")
    for i in range(64):
        e(f"v_mov_b32 v{O+i}, 0")
    e(f"v_mov_b32 v{vl}, 0")
    for s in range(8):
        e.need(("k", "p", s))
        e(f"{MF32} {vr(SA,16)}, {vr(KF+4*s,4)}, {vr(QF+4*s,4)}, {vr(NM if s == 0 else SA,16)}")
    kreads(K0A, 32*KROW, "A")
    e(f"s_mov_b32 s56, {NEGINF}")
    e(f"s_mov_b32 s57, {THR}")
    e(f"s_mov_b32 s58, {THR}")
    e(f"s_mov_b32 s59, {KVSLOT}")
    e("s_mov_b32 s53, 0")
    e("s_nop 3")
    def maxchain(S):
        L = [f"v_max3_f32 v{vmx}, v{S}, v{S+1}, v{S+2}"]
        for i in range(3, 15, 2):
            L.append(f"v_max3_f32 v{vmx}, v{vmx}, v{S+i}, v{S+i+1}")
        L.append(f"v_max_f32 v{vmx}, v{vmx}, v{S+15}")
        return L
    for x in maxchain(SA): e(x)
    e("s_mov_b32 s60, 0")
    e("s_branch L_m_rareA")
    e.label("L_m_retA0")
    e("s_mov_b32 s56, 0")
    e("s_mov_b32 s60, 1")
    e.lds_all()
    e.label("L_m_loop")
    e("s_barrier")
    e.lds_reset()
    def unit(uh, cur, nxt, thr, rare, ktag_in, ktag_out):
        def vread(kk, Tt):
            for ri in range(2):
                e.lds(f"ds_read_b64_tr_b16 {vr(VF+16*kk+4*Tt+2*ri,2)}, v{VA+Tt} offset:{(32*uh+16*kk+8*ri)*256}", ("v", uh, kk, Tt))
        for s in range(8):
            if ("k", ktag_in, s) in e.tok: e.need(("k", ktag_in, s))
            e(f"{MF32} {vr(nxt,16)}, {vr(KF+4*s,4)}, {vr(QF+4*s,4)}, {vr(NM if s == 0 else nxt,16)}")
            e(f"v_exp_f32 v{cur+2*s}, v{cur+2*s}")
            e(f"v_exp_f32 v{cur+2*s+1}, v{cur+2*s+1}")
            if s < 4: vread(0, s)
            elif s >= 6:
                vread(1, 2*(s-6));
            if s >= 4:
                i = s - 4
                e(f"v_cvt_pk_bf16_f32 v{P+i}, v{cur+2*i}, v{cur+2*i+1}")
        vread(1, 1); vread(1, 3)
        adds = [f"v_add_f32 v{vl}, v{vl}, v{cur+i}" for i in range(16)]
        adds = []
        for i in range(0, 16, 2):
            adds.append(f"v_add_f32 v{t0}, v{cur+i}, v{cur+i+1}")
            adds.append(f"v_add_f32 v{vl}, v{vl}, v{t0}")
        mx = maxchain(nxt)
        fill = {
            0: [f"v_cvt_pk_bf16_f32 v{P+4+i}, v{cur+8+2*i}, v{cur+9+2*i}" for i in range(4)],
            1: adds[0:4], 2: adds[4:8], 3: adds[8:12], 4: adds[12:16],
            5: mx[0:3], 6: mx[3:6], 7: mx[6:8],
        }
        m = 0
        for kk in range(2):
            for Tt in range(4):
                e.need(("v", uh, kk, Tt))
                e(f"{MF32} {vr(O+16*Tt,16)}, {vr(VF+16*kk+4*Tt,4)}, {vr(P+4*kk,4)}, {vr(O+16*Tt,16)}")
                for x in fill[m]: e(x)
                kreads(KA, uh*32*KROW, ktag_out, m, m+1)
                m += 1
        e(f"v_cmp_lt_f32 vcc, s{thr}, v{vmx}")
        e(f"s_cbranch_vccnz L_m_rare{rare}")
        e.label(f"L_m_ret{rare}1")
    unit(0, SA, SB, 57, "B", "none", "B")
    e("s_cmp_eq_u32 s53, 15")
    e(f"s_cselect_b32 s58, {POSINF}, s58")
    unit(1, SB, SA, 58, "A", "B", "A2")
    e(f"v_add_u32 v{KA}, s59, v{KA}")
    for i in range(4):
        e(f"v_add_u32 v{VA+i}, s59, v{VA+i}")
    e("s_sub_u32 s59, 0, s59")
    e("s_add_u32 s53, s53, 1")
    e("s_cmp_lt_u32 s53, 16")
    e.lds_all()
    e("s_cbranch_scc1 L_m_loop")
    e("s_barrier")
    e(f"v_mov_b32 v{t0}, v{vl}")
    e("s_nop 1")
    e(f"v_permlane32_swap_b32 v{vl}, v{t0}")
    e("s_nop 1")
    e(f"v_add_f32 v{vl}, v{vl}, v{t0}")
    e(f"v_rcp_f32 v{vl}, v{vl}")
    e(f"v_bfe_u32 v{T}, v{vL}, 4, 1")
    e(f"v_lshlrev_b32 v{T}, 17, v{T}")
    e(f"v_lshrrev_b32 v{T+1}, 5, v{vL}")
    e(f"v_lshl_add_u32 v{T}, v{T+1}, 9, v{T}")
    e(f"v_and_b32 v{T+1}, 15, v{vL}")
    e(f"v_lshl_add_u32 v{T}, v{T+1}, 4, v{T}")
    e("s_mul_i32 s43, s41, 9\ns_lshl_b32 s44, s40, 1\ns_add_u32 s43, s43, s44\ns_lshl_b32 s43, s43, 7")
    e("s_lshl_b32 s44, s42, 2\ns_add_u32 s43, s43, s44\ns_lshl_b32 s43, s43, 10")
    for Tt in range(4):
        for i in range(16):
            e(f"v_mul_f32 v{O+16*Tt+i}, v{vl}, v{O+16*Tt+i}")
        for i in range(8):
            e(f"v_cvt_pk_bf16_f32 v{QF+8*Tt+i}, v{O+16*Tt+2*i}, v{O+16*Tt+2*i+1}")
        for jj in range(2):
            e(f"buffer_store_dwordx4 {vr(QF+8*Tt+4*jj,4)}, v{T}, s[36:39], s43 offen offset:{Tt*1024+jj*256}")
    e("s_endpgm")
    for name, S in (("A", SA), ("B", SB)):
        e.label(f"L_m_rare{name}")
        e("s_nop 15")
        e(f"v_mov_b32 v{t0}, v{vmx}")
        e("s_nop 1")
        e(f"v_permlane32_swap_b32 v{vmx}, v{t0}")
        e("s_nop 1")
        e(f"v_max_f32 v{vmx}, v{vmx}, v{t0}")
        e(f"v_max_f32 v{vmx}, s56, v{vmx}")
        e(f"v_max_f32 v{t0}, 0, v{vmx}")
        e(f"v_exp_f32 v{t0}, -v{t0}")
        for i in range(16):
            e(f"v_sub_f32 v{S+i}, v{S+i}, v{vmx}")
        for i in range(16):
            e(f"v_sub_f32 v{NM+i}, v{NM+i}, v{vmx}")
        e(f"v_mul_f32 v{vl}, v{vl}, v{t0}")
        for i in range(64):
            e(f"v_mul_f32 v{O+i}, v{t0}, v{O+i}")
        e("s_nop 1")
        if name == "A":
            e("s_cmp_eq_u32 s60, 0")
            e("s_cbranch_scc1 L_m_retA0")
        e(f"s_branch L_m_ret{name}1")

def helper_wave(e, vL):
    O9 = 0; Q9 = 32; NM = 48; S = 52; P = 60; F = 64; LA = 96; ONES = 100
    vKo = 104; vVo = 105; KW = 106; VW = 107; KR = 108; VR = 109
    XQ = 113
    WQ = 115; K0R = 116; K0W = 117; vmx = 118; t0 = 119
    T = 120
    BUF = 128
    e.label("L_helper")
    L = 127
    e(f"v_mov_b32 v{L}, v{vL}")
    e("s_sub_u32 s40, s40, 4")
    e("s_lshl_b32 s43, s40, 12")
    e(f"v_lshlrev_b32 v{vKo}, 4, v{L}")
    e(f"v_add_u32 v{vKo}, s43, v{vKo}")
    e(f"v_mov_b32 v{vVo}, v{vKo}")
    def loadK(buf):
        for n in range(4):
            e(f"buffer_load_dwordx4 {vr(BUF+32*buf+4*n,4)}, v{vKo}, s[28:31], 0 offen offset:{n*1024} nt")
        e(f"v_add_u32 v{vKo}, 16384, v{vKo}")
    def loadV(buf):
        for n in range(4):
            e(f"buffer_load_dwordx4 {vr(BUF+32*buf+16+4*n,4)}, v{vVo}, s[32:35], 0 offen offset:{n*1024} nt")
        e(f"v_add_u32 v{vVo}, 16384, v{vVo}")
    loadK(0)
    for s in range(3):
        loadK(s + 1); loadV(s + 1)
    r, c, g1, h, g = lane_fields(e, L, T)
    a = T + 5; b_ = T + 6
    e("s_lshl_b32 s43, s40, 4")
    e(f"v_add_u32 v{a}, s43, v{g}")
    e(f"v_mul_u32_u24 v{KW}, {KROW}, v{a}")
    e(f"v_and_b32 v{b_}, 15, v{L}")
    e(f"v_lshl_add_u32 v{KW}, v{b_}, 4, v{KW}")
    e(f"v_add_u32 v{K0W}, {K0OFF}, v{KW}")
    e(f"v_lshlrev_b32 v{VW}, 8, v{a}")
    e(f"v_lshlrev_b32 v{a}, 2, v{g}")
    e(f"v_xor_b32 v{a}, v{a}, v{b_}")
    e(f"v_lshl_add_u32 v{VW}, v{a}, 4, v{VW}")
    e(f"v_add_u32 v{VW}, {VOFF}, v{VW}")
    e("s_lshr_b32 s44, s40, 1\ns_and_b32 s45, s40, 1")
    e("s_lshl_b32 s43, s45, 5")
    e(f"v_add_u32 v{a}, s43, v{b_}")
    e(f"v_mul_u32_u24 v{KR}, {KROW}, v{a}")
    e(f"v_lshl_add_u32 v{KR}, v{g}, 4, v{KR}")
    e(f"v_add_u32 v{K0R}, {K0OFF}, v{KR}")
    e(f"s_xor_b32 s46, s44, 1\ns_mul_i32 s46, s46, {KVSLOT}")
    e(f"v_add_u32 v{KR}, s46, v{KR}")
    e(f"v_lshl_add_u32 v{a}, v{g}, 2, v{r}")
    e(f"v_add_u32 v{a}, s43, v{a}")
    e(f"v_lshlrev_b32 v{a}, 8, v{a}")
    e(f"s_mul_i32 s46, s44, {KVSLOT}\ns_add_u32 s46, s46, {VOFF}")
    e(f"v_add_u32 v{a}, s46, v{a}")
    e(f"v_lshl_add_u32 v{b_}, v{r}, 2, v{c}")
    for Tt in range(4):
        e(f"v_xor_b32 v{t0}, {4*Tt}, v{b_}")
        e(f"v_lshl_add_u32 v{VR+Tt}, v{t0}, 4, v{a}")
    e(f"v_lshl_add_u32 v{a}, v{g}, 3, v{r}")
    e(f"v_lshlrev_b32 v{a}, 8, v{a}")
    e(f"v_add_u32 v{a}, {2*QSLOT + QW}, v{a}")
    e("s_lshl_b32 s43, s40, 2")
    e(f"v_xor_b32 v{t0}, s43, v{b_}")
    e(f"v_lshl_add_u32 v{WQ}, v{t0}, 4, v{a}")
    e(f"v_and_b32 v{a}, 15, v{L}")
    e(f"v_lshlrev_b32 v{a}, 7, v{a}")
    e(f"v_add_u32 v{a}, {2*QSLOT + 128*128}, v{a}")
    e(f"v_bfe_u32 v{b_}, v{L}, 1, 3")
    e(f"v_xor_b32 v{b_}, v{b_}, v{g}")
    for ks in range(2):
        e(f"v_xor_b32 v{t0}, {4*ks}, v{b_}")
        e(f"v_lshl_add_u32 v{XQ+ks}, v{t0}, 4, v{a}")
    for i in range(32): e(f"v_mov_b32 v{O9+i}, 0")
    for i in range(8): e(f"v_mov_b32 v{S+i}, 0")
    for i in range(4):
        e(f"v_mov_b32 v{LA+i}, 0")
        e(f"v_mov_b32 v{NM+i}, 0")
        e(f"v_mov_b32 v{ONES+i}, 0x3f803f80")
    def dumpK(buf, addr, off):
        for n in range(4):
            e.lds(f"ds_write_b128 v{addr}, {vr(BUF+32*buf+4*n,4)} offset:{off + n*4*KROW}")
    def dumpV(buf, off):
        for n in range(4):
            e.lds(f"ds_write_b128 v{VW}, {vr(BUF+32*buf+16+4*n,4)} offset:{off + n*1024}")
    e("s_mov_b32 s53, 0")
    e(f"s_mov_b32 s54, {2*QSLOT}")
    e.label("L_h_q")
    e("s_barrier")
    e.lds_reset()
    for ks in range(2):
        e.lds(f"ds_read_b128 {vr(F+12*ks,4)}, v{XQ+ks}", ("hx", ks))
        for u in range(2):
            for ri in range(2):
                e.lds(f"ds_read_b64_tr_b16 {vr(F+12*ks+4+4*u+2*ri,2)}, v{WQ} offset:{(32*ks+4*ri)*256+8*u}", ("hw", ks, u))
    for ks in range(2):
        for u in range(2):
            e.need(("hx", ks), ("hw", ks, u))
            e(f"{MF16} {vr(S+4*u,4)}, {vr(F+12*ks+4+4*u,4)}, {vr(F+12*ks,4)}, {vr(S+4*u,4)}")
    e(f"s_add_u32 s54, s54, {QSLOT}")
    e(f"s_mov_b32 s55, {QSLOT}")
    e(f"s_cmp_ge_u32 s54, {4*QSLOT}")
    e(f"s_cselect_b32 s55, {(-3*QSLOT) & 0xffffffff}, s55")
    e(f"s_cselect_b32 s54, 0, s54")
    e(f"v_add_u32 v{XQ}, s55, v{XQ}\nv_add_u32 v{XQ+1}, s55, v{XQ+1}\nv_add_u32 v{WQ}, s55, v{WQ}")
    e("s_cmp_lg_u32 s53, 4\ns_cbranch_scc1 L_h_q_nok0")
    e("s_waitcnt vmcnt(24)")
    dumpK(0, K0W, 0)
    loadK(0); loadV(0)
    e.lds_all()
    e.label("L_h_q_nok0")
    e("s_add_u32 s53, s53, 1")
    e("s_cmp_lt_u32 s53, 10\ns_cbranch_scc1 L_h_q")
    e("s_nop 7")
    e(f"s_mov_b32 s43, {f32(SCALE)}")
    for i in range(8): e(f"v_mul_f32 v{S+i}, s43, v{S+i}")
    for i in range(4): e(f"v_cvt_pk_bf16_f32 v{P+i}, v{S+2*i}, v{S+2*i+1}")
    e(f"v_lshlrev_b32 v{a}, 4, v{L}")
    e(f"v_add_u32 v{a}, {Q9X}, v{a}")
    e("s_lshl_b32 s43, s40, 10")
    e(f"v_add_u32 v{b_}, s43, v{a}")
    e.lds(f"ds_write_b128 v{b_}, {vr(P,4)}")
    e.lds_all()
    e("s_barrier")
    for ks in range(4):
        e.lds(f"ds_read_b128 {vr(Q9+4*ks,4)}, v{a} offset:{ks*1024}")
    e(f"s_mov_b32 s56, {NEGINF}")
    e(f"s_mov_b32 s57, {NEGINF}")
    e.lds_all()
    cnt = [0]
    def qk_block(addr):
        cnt[0] += 1
        n = cnt[0]
        e.lds_reset()
        for kb in range(2):
            for ks in range(4):
                e.lds(f"ds_read_b128 {vr(F+16*kb+4*ks,4)}, v{addr} offset:{kb*16*KROW + ks*64}", ("hk", kb, ks))
        for kb in range(2):
            for ks in range(4):
                e.need(("hk", kb, ks))
                e(f"{MF16} {vr(S+4*kb,4)}, {vr(F+16*kb+4*ks,4)}, {vr(Q9+4*ks,4)}, {vr(NM if ks == 0 else S+4*kb,4)}")
        e("s_nop 7")
        e(f"v_max3_f32 v{vmx}, v{S}, v{S+1}, v{S+2}")
        e(f"v_max3_f32 v{vmx}, v{vmx}, v{S+3}, v{S+4}")
        e(f"v_max3_f32 v{vmx}, v{vmx}, v{S+5}, v{S+6}")
        e(f"v_max_f32 v{vmx}, v{vmx}, v{S+7}")
        e(f"v_cmp_lt_f32 vcc, s57, v{vmx}")
        e(f"s_cbranch_vccz L_h_norare{n}")
        e(f"v_mov_b32 v{t0}, v{vmx}")
        e("s_nop 1")
        e(f"v_permlane32_swap_b32 v{vmx}, v{t0}")
        e("s_nop 1")
        e(f"v_max_f32 v{vmx}, v{vmx}, v{t0}")
        e(f"v_mov_b32 v{t0}, v{vmx}")
        e("s_nop 1")
        e(f"v_permlane16_swap_b32 v{vmx}, v{t0}")
        e("s_nop 1")
        e(f"v_max_f32 v{vmx}, v{vmx}, v{t0}")
        e(f"v_max_f32 v{vmx}, s56, v{vmx}")
        e(f"v_max_f32 v{t0}, 0, v{vmx}")
        e(f"v_exp_f32 v{t0}, -v{t0}")
        for i in range(8): e(f"v_sub_f32 v{S+i}, v{S+i}, v{vmx}")
        for i in range(4): e(f"v_sub_f32 v{NM+i}, v{NM+i}, v{vmx}")
        for i in range(4): e(f"v_mul_f32 v{LA+i}, v{t0}, v{LA+i}")
        for i in range(32): e(f"v_mul_f32 v{O9+i}, v{t0}, v{O9+i}")
        e(f"s_mov_b32 s56, 0\ns_mov_b32 s57, {THR}")
        e.label(f"L_h_norare{n}")
        for i in range(8): e(f"v_exp_f32 v{S+i}, v{S+i}")
        e("s_nop 0")
        for i in range(4): e(f"v_cvt_pk_bf16_f32 v{P+i}, v{S+2*i}, v{S+2*i+1}")
        e("s_nop 1")
    def pv_block():
        e.lds_reset()
        def rd(Tt):
            for u in range(2):
                for ri in range(2):
                    e.lds(f"ds_read_b64_tr_b16 {vr(F+8*Tt+4*u+2*ri,2)}, v{VR+Tt} offset:{8*u+ri*4096}", ("hv", Tt, u))
        rd(0); rd(1); rd(2)
        e(f"{MF16} {vr(LA,4)}, {vr(ONES,4)}, {vr(P,4)}, {vr(LA,4)}")
        for Tt in range(4):
            for u in range(2):
                e.need(("hv", Tt, u))
                e(f"{MF16} {vr(O9+8*Tt+4*u,4)}, {vr(F+8*Tt+4*u,4)}, {vr(P,4)}, {vr(O9+8*Tt+4*u,4)}")
            if Tt == 0: rd(3)
    e("s_cmp_lg_u32 s44, 0\ns_cbranch_scc1 L_h_noqk0")
    qk_block(K0R)
    e.label("L_h_noqk0")
    e("s_waitcnt vmcnt(24)")
    e.lds_reset()
    dumpK(1, KW, 0); dumpV(1, 0)
    loadK(1); loadV(1)
    e.lds_all()
    e("s_mov_b32 s53, 0")
    e.label("L_h_loop")
    for tt in range(4):
        e("s_barrier")
        e(f"s_cmp_eq_u32 s44, {tt & 1}")
        e(f"s_cbranch_scc1 L_h_pv{tt}")
        if tt == 3:
            e("s_cmp_eq_u32 s53, 3")
            e(f"s_cbranch_scc1 L_h_cdone{tt}")
        qk_block(KR)
        e(f"s_branch L_h_cdone{tt}")
        e.label(f"L_h_pv{tt}")
        pv_block()
        e.label(f"L_h_cdone{tt}")
        if tt == 3:
            e("s_cmp_eq_u32 s53, 3")
            e("s_cbranch_scc1 L_h_fin")
        e("s_waitcnt vmcnt(24)")
        e.lds_reset()
        buf = (tt + 2) % 4; so = ((tt + 1) % 2) * KVSLOT
        dumpK(buf, KW, so); dumpV(buf, so)
        loadK(buf); loadV(buf)
        e.lds_all()
    e("s_add_u32 s53, s53, 1")
    e("s_branch L_h_loop")
    e.label("L_h_fin")
    e("s_nop 7")
    e(f"s_mul_i32 s43, s40, {CMBW}\ns_add_u32 s43, s43, {CMB}")
    e(f"v_lshlrev_b32 v{a}, 4, v{L}")
    e(f"v_add_u32 v{a}, s43, v{a}")
    e(f"v_lshlrev_b32 v{b_}, 3, v{L}")
    e(f"v_add_u32 v{b_}, s43, v{b_}")
    e(f"v_mov_b32 v{NM+1}, v{LA}")
    e.lds_reset()
    for i in range(8):
        e.lds(f"ds_write_b128 v{a}, {vr(O9+4*i,4)} offset:{i*1024}")
    e.lds(f"ds_write_b64 v{b_}, {vr(NM,2)} offset:8192")
    e.lds_all()
    e("s_barrier")
    e("s_lshl_b32 s43, s40, 11")
    e(f"s_add_u32 s43, s43, {CMB}")
    e(f"v_lshlrev_b32 v{a}, 4, v{L}")
    e(f"v_add_u32 v{a}, s43, v{a}")
    e(f"v_lshlrev_b32 v{b_}, 3, v{L}")
    e(f"v_add_u32 v{b_}, {CMB}, v{b_}")
    ML = 32
    OP = 64
    for jj in range(4):
        e.lds(f"ds_read_b64 {vr(ML+2*jj,2)}, v{b_} offset:{8192 + jj*CMBW}")
    for jj in range(4):
        for u in range(2):
            e.lds(f"ds_read_b128 {vr(OP+8*jj+4*u,4)}, v{a} offset:{jj*CMBW + u*1024}")
    e.lds_all()
    e(f"v_min_f32 v{vmx}, v{ML}, v{ML+2}")
    e(f"v_min3_f32 v{vmx}, v{vmx}, v{ML+4}, v{ML+6}")
    for jj in range(4):
        e(f"v_sub_f32 v{ML+2*jj}, v{vmx}, v{ML+2*jj}")
    for jj in range(4):
        e(f"v_exp_f32 v{ML+2*jj}, v{ML+2*jj}")
    e("s_nop 0")
    e(f"v_mul_f32 v{t0}, v{ML}, v{ML+1}")
    for jj in range(1, 4):
        e(f"v_fmac_f32 v{t0}, v{ML+2*jj}, v{ML+2*jj+1}")
    e(f"v_rcp_f32 v{t0}, v{t0}")
    for i in range(8):
        e(f"v_mul_f32 v{i}, v{ML}, v{OP+i}")
        for jj in range(1, 4):
            e(f"v_fmac_f32 v{i}, v{ML+2*jj}, v{OP+8*jj+i}")
    for i in range(8):
        e(f"v_mul_f32 v{i}, v{t0}, v{i}")
    for i in range(4):
        e(f"v_cvt_pk_bf16_f32 v{8+i}, v{2*i}, v{2*i+1}")
    e("s_mul_i32 s43, s41, 9\ns_add_u32 s43, s43, 8\ns_lshl_b32 s43, s43, 7")
    e("s_lshl_b32 s46, s42, 2\ns_add_u32 s43, s43, s46\ns_add_u32 s43, s43, s40\ns_lshl_b32 s43, s43, 10")
    e(f"v_lshlrev_b32 v{a}, 4, v{L}")
    e(f"buffer_store_dwordx4 {vr(8,4)}, v{a}, s[36:39], s43 offen")
    e("s_endpgm")

K2D = 4
LDS_K2 = 8 * K2D * 4096
def k2(e):
    e.label("oproj_kernel")
    e("s_cmp_ge_u32 s2, 240")
    e("s_cbranch_scc1 L_k2_end")
    e("s_load_dwordx8 s[12:19], s[0:1], 32")
    L = 200; T = 201
    ACC = 0; OF = 48; WFR = 112; RA = 128; DV = 132; OV = 134
    e(f"v_and_b32 v{L}, 63, v0")
    e("v_lshrrev_b32 v1, 6, v0")
    e("s_mul_i32 s41, s2, 6554\ns_lshr_b32 s41, s41, 16")
    e("v_readfirstlane_b32 s40, v1")
    e("s_mul_i32 s42, s41, 10\ns_sub_u32 s42, s2, s42")
    e("s_waitcnt lgkmcnt(0)")
    e("s_mov_b32 s20, s12\ns_mov_b32 s21, s13\ns_mov_b32 s22, 5242880\ns_mov_b32 s23, 0x20000")
    e("s_mov_b32 s24, s14\ns_mov_b32 s25, s15\ns_mov_b32 s26, 1474560\ns_mov_b32 s27, 0x20000")
    e("s_mov_b32 s36, s18\ns_mov_b32 s37, s19\ns_mov_b32 s38, 9437184\ns_mov_b32 s39, 0x20000")
    e(f"v_lshrrev_b32 v{T}, 3, v{L}")
    e(f"v_mul_u32_u24 v{T}, 1280, v{T}")
    e(f"v_bfe_u32 v{T+1}, v{L}, 4, 1")
    e(f"v_lshlrev_b32 v{T+1}, 1, v{T+1}")
    e(f"v_and_b32 v{T+2}, 7, v{L}")
    e(f"v_xor_b32 v{T+1}, v{T+1}, v{T+2}")
    e(f"v_lshl_add_u32 v{DV}, v{T+1}, 4, v{T}")
    e(f"v_xor_b32 v{T+1}, 4, v{T+1}")
    e(f"v_lshl_add_u32 v{DV+1}, v{T+1}, 4, v{T}")
    e(f"v_lshlrev_b32 v{OV}, 4, v{L}")
    e("s_mul_i32 s43, s40, 655360\ns_lshl_b32 s46, s42, 7\ns_add_u32 s43, s43, s46")
    e(f"s_mul_i32 s44, s40, {K2D*4096}")
    e("s_mul_i32 s45, s41, 393216\ns_lshl_b32 s46, s40, 14\ns_add_u32 s45, s45, s46")
    def issue(ks):
        sl = ks % K2D
        for n in range(4):
            e(f"s_add_u32 s46, s44, {sl*4096 + n*1024}")
            e("s_mov_b32 m0, s46")
            e(f"s_add_u32 s47, s43, {(ks*32 + n*8)*1280}")
            e(f"buffer_load_dwordx4 v{DV+(n&1)}, s[20:23], s47 offen lds")
        for rb in range(3):
            e(f"s_add_u32 s47, s45, {rb*131072 + ks*1024}")
            e(f"buffer_load_dwordx4 {vr(OF+16*sl+4*rb,4)}, v{OV}, s[36:39], s47 offen")
    for ks in range(K2D):
        issue(ks)
    r, c, g1, h, g = lane_fields(e, L, T)
    a = T + 5; b_ = T + 6; cc = T + 7
    e(f"v_lshl_add_u32 v{a}, v{g}, 3, v{r}")
    e(f"v_lshlrev_b32 v{a}, 7, v{a}")
    e(f"v_and_b32 v{b_}, 1, v{c}")
    e(f"v_lshl_add_u32 v{a}, v{b_}, 3, v{a}")
    e(f"v_add_u32 v{a}, s44, v{a}")
    e(f"v_and_b32 v{b_}, 2, v{r}")
    e(f"v_lshl_add_u32 v{b_}, v{g1}, 2, v{b_}")
    e(f"v_lshrrev_b32 v{cc}, 1, v{c}")
    e(f"v_or_b32 v{b_}, v{b_}, v{cc}")
    for nb in range(4):
        e(f"v_xor_b32 v{cc}, {2*nb}, v{b_}")
        e(f"v_lshl_add_u32 v{RA+nb}, v{cc}, 4, v{a}")
    for i in range(48): e(f"v_mov_b32 v{ACC+i}, 0")
    for ks in range(16):
        sl = ks % K2D
        rem = min(K2D - 1, 15 - ks)
        e(f"s_waitcnt vmcnt({7*rem})")
        e.lds_reset()
        for nb in range(4):
            for ri in range(2):
                e.lds(f"ds_read_b64_tr_b16 {vr(WFR+4*nb+2*ri,2)}, v{RA+nb} offset:{sl*4096+ri*512}", ("wo", nb))
        for nb in range(4):
            e.need(("wo", nb))
            for rb in range(3):
                e(f"{MF16} {vr(ACC+12*nb+4*rb,4)}, {vr(WFR+4*nb,4)}, {vr(OF+16*sl+4*rb,4)}, {vr(ACC+12*nb+4*rb,4)}")
        if ks + K2D < 16:
            issue(ks + K2D)
    e("s_barrier")
    e("s_mul_i32 s46, s40, 12288")
    e(f"v_add_u32 v{a}, s46, v{OV}")
    e("s_nop 4")
    e.lds_reset()
    for i in range(12):
        e.lds(f"ds_write_b128 v{a}, {vr(ACC+4*i,4)} offset:{i*1024}")
    e.lds_all()
    e("s_barrier")
    e("s_cmp_ge_u32 s40, 6")
    e("s_cbranch_scc1 L_k2_end")
    e("s_lshl_b32 s46, s40, 11")
    e(f"v_add_u32 v{a}, s46, v{OV}")
    e(f"v_add_u32 v{b_}, 49152, v{a}")
    for tl in range(2):
        e.lds_reset()
        for w in range(8):
            ad = a if w < 4 else b_
            e.lds(f"ds_read_b128 {vr(64+4*w,4)}, v{ad} offset:{(w%4)*12288 + tl*1024}")
        e.lds_all()
        for w in range(1, 8):
            for i in range(4):
                e(f"v_add_f32 v{64+i}, v{64+i}, v{64+4*w+i}")
        e(f"v_cvt_pk_bf16_f32 v{96+2*tl}, v64, v65")
        e(f"v_cvt_pk_bf16_f32 v{97+2*tl}, v66, v67")
        e(f"s_lshl_b32 s46, s40, 1\ns_add_u32 s46, s46, {tl}")
        e("s_mul_i32 s47, s46, 22\ns_lshr_b32 s47, s47, 6")
        e("s_mul_i32 s48, s47, 3\ns_sub_u32 s48, s46, s48")
        e("s_mul_i32 s49, s41, 3\ns_add_u32 s49, s49, s48\ns_mul_i32 s49, s49, 20480")
        e("s_lshl_b32 s50, s42, 7\ns_add_u32 s49, s49, s50\ns_lshl_b32 s50, s47, 5\ns_add_u32 s49, s49, s50")
        e(f"v_and_b32 v{cc}, 15, v{L}")
        e(f"v_mul_u32_u24 v{cc}, 1280, v{cc}")
        e(f"v_lshl_add_u32 v{cc}, v{g}, 3, v{cc}")
        e(f"buffer_store_dwordx2 {vr(96+2*tl,2)}, v{cc}, s[24:27], s49 offen")
    e.label("L_k2_end")
    e("s_endpgm")

def desc(name, vgpr, sgpr=102):
    return f""".amdhsa_kernel {name}
  .amdhsa_next_free_vgpr {vgpr}
  .amdhsa_next_free_sgpr {sgpr}
  .amdhsa_accum_offset {(vgpr+3)//4*4}
  .amdhsa_group_segment_fixed_size 0
  .amdhsa_kernarg_size 64
  .amdhsa_user_sgpr_count 2
  .amdhsa_user_sgpr_kernarg_segment_ptr 1
  .amdhsa_system_sgpr_workgroup_id_x 1
.end_amdhsa_kernel
"""

def build(extra_empty=0):
    e = Em()
    hdr = f"; @launch kernel=attn_kernel grid=(256,1,1) block=(512,1,1) lds={LDS_K1}\n"
    hdr += f"; @launch kernel=oproj_kernel grid=(240,1,1) block=(512,1,1) lds={LDS_K2}\n"
    for i in range(extra_empty):
        hdr += f"; @launch kernel=empty_kernel grid=(256,1,1) block=(256,1,1) lds=0\n"
    e('.amdgcn_target "amdgcn-amd-amdhsa--gfx950"\n.text\n.globl attn_kernel\n.p2align 8\n.type attn_kernel,@function')
    k1(e)
    e(".globl oproj_kernel\n.p2align 8\n.type oproj_kernel,@function")
    k2(e)
    if extra_empty:
        e(".globl empty_kernel\n.p2align 8\n.type empty_kernel,@function")
        e.label("empty_kernel")
        e("s_endpgm")
    body = e.text()
    tail = '.section .rodata,"a"\n.p2align 6\n' + desc("attn_kernel", 256) + ".p2align 6\n" + desc("oproj_kernel", 216)
    if extra_empty:
        tail += ".p2align 6\n" + desc("empty_kernel", 8)
    for r in check_text(body): print(r, file=sys.stderr)
    return hdr + body + tail

if __name__ == "__main__":
    out = sys.argv[1] if len(sys.argv) > 1 else "v1.s"
    ee = int(sys.argv[2]) if len(sys.argv) > 2 else 0
    open(out, "w").write(build(ee))
```
